```python
import torch

def _softmax(x, axis=-1):
    return torch.softmax(x, dim=axis)
def _gelu(x):
    return torch.nn.functional.gelu(x, approximate="tanh")
def _silu(x):
    return torch.nn.functional.silu(x)
def _sigmoid(x):
    return torch.sigmoid(x)
def _layernorm(x, axis=-1, eps=1e-5):
    m = x.mean(dim=axis, keepdim=True)
    v = x.var(dim=axis, keepdim=True, unbiased=False)
    return (x - m) / torch.sqrt(v + eps)
def _scatter_add(tgt, idx, src, axis=0):
    return tgt.clone().index_add_(axis, idx, src)
def _segment_sum(src, seg, n):
    out = torch.zeros((n,) + src.shape[1:], dtype=src.dtype)
    return out.index_add_(0, seg, src)
def _pad(x, pw):
    flat = tuple(v for pair in reversed(pw) for v in pair)
    return torch.nn.functional.pad(x, flat)

kernel_name = 'standalone__dense_activation_gelu__prompt'

def setup_inputs():

    _w = (lambda a: (lambda t: t.to(torch.bfloat16) if t.is_floating_point() else t)(torch.as_tensor(a)))
    B, S, D, F = 1, 2048, 576, 4608
    return {
        "x": _w((lambda *s: torch.randn(*s, dtype=torch.bfloat16) * 0.05)(B, S, D)),
        "w1": _w((lambda *s: torch.randn(*s, dtype=torch.bfloat16) * 3.2)(D, F) * (D ** -0.5)),
        "b1": _w((lambda *s: torch.randn(*s, dtype=torch.bfloat16) * 3.2)(F) * 0.01),
        "w2": _w((lambda *s: torch.randn(*s, dtype=torch.bfloat16) * 0.05)(F, D) * (F ** -0.5)),
        "b2": _w((lambda *s: torch.randn(*s, dtype=torch.bfloat16) * 0.1)(D) * 0.01),
    }

def reference(x, w1, b1, w2, b2):
    h = torch.einsum("bsd,df->bsf", x, w1) + b1
    h = _gelu(h)
    return torch.einsum("bsf,fd->bsd", h, w2) + b2
```

```python
import struct

def f32bits(x):
    return struct.unpack("<I", struct.pack("<f", x))[0]

class Prog:
    def __init__(self):
        self.lines = []
        self.vm = []
        self.lg = []
        self.nuniq = 0
        self.stats = {}
    def raw(self, s):
        for l in s.strip("\n").split("\n"):
            self.lines.append(l)
    def c(self, s):
        self.lines.append("; " + s)
    def emit(self, s, kind):
        self.lines.append("    " + s)
        self.stats[kind] = self.stats.get(kind, 0) + 1
    def s(self, txt):
        for l in txt.strip("\n").split("\n"):
            self.emit(l.strip(), 's')
    def v(self, txt):
        for l in txt.strip("\n").split("\n"):
            self.emit(l.strip(), 'v')
    def mfma(self, txt):
        self.emit(txt, 'm')
    def vmem(self, txt, tag=None):
        self.emit(txt, 'vm')
        if tag is None:
            self.nuniq += 1
            tag = ("_vm", self.nuniq)
        self.vm.append(tag)
        assert len(self.vm) <= 63 + 64, "too many vm"
        return tag
    def lds(self, txt, tag=None):
        self.emit(txt, 'ds')
        if tag is None:
            self.nuniq += 1
            tag = ("_lg", self.nuniq)
        self.lg.append(tag)
        return tag
    def _cnt(self, q, tags, mx):
        last = -1
        for i, t in enumerate(q):
            if t in tags:
                last = i
        if last < 0:
            return None
        n = len(q) - 1 - last
        n = min(n, mx)
        return n
    def wait(self, vm=(), lg=(), force=False):
        vm = set(vm); lg = set(lg)
        nv = self._cnt(self.vm, vm, 63)
        nl = self._cnt(self.lg, lg, 15)
        parts = []
        if nv is not None:
            parts.append(f"vmcnt({nv})")
            self.vm = self.vm[len(self.vm) - nv:] if nv else []
        if nl is not None:
            parts.append(f"lgkmcnt({nl})")
            self.lg = self.lg[len(self.lg) - nl:] if nl else []
        if parts:
            self.emit("s_waitcnt " + " ".join(parts), 's')
            return True
        return False
    def wait_all(self, vm=True, lg=True):
        parts = []
        if vm:
            parts.append("vmcnt(0)"); self.vm = []
        if lg:
            parts.append("lgkmcnt(0)"); self.lg = []
        self.emit("s_waitcnt " + " ".join(parts), 's')
    def check_counts(self):
        assert len(self.vm) <= 63, f"vm outstanding {len(self.vm)}"
        assert len(self.lg) <= 15, f"lg outstanding {len(self.lg)}"
    def text(self):
        return "\n".join(self.lines) + "\n"

def rr(kind, base, n):
    return f"{kind}[{base}:{base+n-1}]" if n > 1 else f"{kind}{base}"

def kernel_header(name):
    return f""".text
.globl {name}
.p2align 8
.type {name},@function
{name}:
"""
def kernel_desc(name, vgpr=512, sgpr=102, accum=256):
    return f""".section .rodata,"a"
.p2align 6
.amdhsa_kernel {name}
  .amdhsa_next_free_vgpr {vgpr}
  .amdhsa_next_free_sgpr {sgpr}
  .amdhsa_accum_offset {accum}
  .amdhsa_group_segment_fixed_size 0
  .amdhsa_kernarg_size 64
  .amdhsa_user_sgpr_count 2
  .amdhsa_user_sgpr_kernarg_segment_ptr 1
  .amdhsa_system_sgpr_workgroup_id_x 1
  .amdhsa_float_denorm_mode_32 3
.end_amdhsa_kernel
"""
TARGET = '.amdgcn_target "amdgcn-amd-amdhsa--gfx950"\n'
STAMP_OFF = 200 << 20
```

```python
import re, sys

REG = re.compile(r"\b([vas])\[(\d+):(\d+)\]|\b([vas])(\d+)\b")
def regs(tok):
    out = []
    for m in REG.finditer(tok):
        if m.group(1):
            out += [(m.group(1), i) for i in range(int(m.group(2)), int(m.group(3)) + 1)]
        else:
            out.append((m.group(4), int(m.group(5))))
    return out
TRANS = ("v_exp_f32", "v_rcp_f32", "v_log_f32", "v_rsq_f32", "v_sqrt_f32", "v_sin_f32", "v_cos_f32")

def parse(line):
    l = line.split(";")[0].strip()
    if not l or l.endswith(":") or l.startswith("."):
        return None
    p = l.split(None, 1)
    op = p[0]
    args = [a.strip() for a in p[1].split(",")] if len(p) > 1 else []
    return op, args, l

def classify(op, args, l):
    if op == "v_nop":
        return "valu", [], [], None
    if op.startswith("v_mfma"):
        return "mfma", regs(args[0]), regs(args[1]) + regs(args[2]), regs(args[3])
    if op.startswith("ds_read"):
        return "dsr", regs(args[0]), regs(args[1]), None
    if op.startswith("ds_write"):
        return "dsw", [], regs(args[0]) + regs(",".join(args[1:])), None
    if op.startswith("buffer_load") or op.startswith("global_load"):
        if l.rstrip().endswith(" lds"):
            return "dma", [], regs(",".join(args)), None
        return "vld", regs(args[0]), regs(",".join(args[1:])), None
    if op.startswith("buffer_store"):
        return "vst", [], regs(",".join(args)), regs(args[0])
    if op.startswith("global_store"):
        return "vst", [], regs(",".join(args)), regs(args[1])
    if op.startswith("buffer_atomic"):
        w = regs(args[0]) if " sc0" in l else []
        return ("vld" if w else "vst"), w, regs(",".join(args)), regs(args[0])
    if op.startswith("buffer_"):
        return "vst", [], [], []
    if op.startswith("v_cmp"):
        w = regs(args[0]) if args[0] != "vcc" else [("x", "vcc")]
        return "valu", w, regs(",".join(args[1:])), None
    if op.startswith("v_permlane") :
        return "valu", regs(args[0]) + regs(args[1]), regs(args[0]) + regs(args[1]), None
    if op.startswith("v_"):
        rd = regs(",".join(args[1:]))
        if op.startswith("v_fmac") or op.startswith("v_dot2c"):
            rd += regs(args[0])
        return "valu", regs(args[0]), rd, None
    if op.startswith("s_load") or op.startswith("s_mem"):
        return "smem", regs(args[0]), regs(",".join(args[1:])), None
    if op.startswith("s_"):
        if op in ("s_waitcnt", "s_barrier", "s_nop", "s_endpgm", "s_setprio", "s_sleep") or op.startswith("s_cbranch") or op == "s_branch":
            return "sctl", [], [], None
        if op.startswith("s_cmp"):
            return "salu", [], regs(",".join(args)), None
        w = regs(args[0]) if args else []
        if args and args[0] == "m0":
            w = [("x", "m0")]
        return "salu", w, regs(",".join(args[1:])), None
    raise Exception("unknown op " + l)

def verify(text, verbose=True):
    errs = []
    pos = 0
    last_mfma_w = {}
    last_mfma_c = {}
    last_valu_w = {}
    last_trans_w = {}
    last_store_data = {}
    last_m0 = -99
    vmq = []; lgq = []
    smem_out = False
    for ln, line in enumerate(text.split("\n"), 1):
        p = parse(line)
        if p is None:
            if re.match(r"^\w+_kernel:", line.strip()):
                last_mfma_w.clear(); last_mfma_c.clear(); last_valu_w.clear(); last_trans_w.clear(); last_store_data.clear(); vmq = []; lgq = []
            continue
        op, args, l = p
        kind, W, R, X = classify(op, args, l)
        def err(msg):
            errs.append(f"line {ln}: {l}  -> {msg}")
        touched = set(W) | set(R) | (set(X) if (kind == "mfma" and X) else set())
        for q, nm in ((vmq, "vm"), (lgq, "lgkm")):
            for d in q:
                bad = d & touched
                if bad:
                    err(f"touches {sorted(bad)[:3]} with pending {nm} load")
        if kind == "sctl":
            if op == "s_waitcnt":
                m = re.search(r"vmcnt\((\d+)\)", l)
                if m:
                    n = int(m.group(1)); vmq = vmq[len(vmq) - n:] if n and n < len(vmq) else ([] if n == 0 else vmq)
                m = re.search(r"lgkmcnt\((\d+)\)", l)
                if m:
                    n = int(m.group(1))
                    if smem_out and n != 0:
                        err("counted lgkmcnt with smem outstanding")
                    if n == 0: smem_out = False
                    lgq = lgq[len(lgq) - n:] if n and n < len(lgq) else ([] if n == 0 else lgq)
            if op == "s_nop":
                pos += int(args[0], 0) + 1
            else:
                pos += 1
            continue
        def dist(p0):
            return pos - p0 - 1
        if kind == "mfma":
            passes = 8 if "32x32" in op else 4
            for r in R:
                if r in last_valu_w and dist(last_valu_w[r]) < 2: err(f"valu->mfma A/B {r}")
                if r in last_mfma_w:
                    p0, ps, _ = last_mfma_w[r]
                    need = 12 if ps == 8 else 8
                    if dist(p0) < need: err(f"mfma D->mfma A/B {r}")
            Ct = tuple(X); Dt = tuple(W)
            for r in X:
                if r in last_valu_w and dist(last_valu_w[r]) < 2: err(f"valu->mfma C {r}")
                if r in last_mfma_w:
                    p0, ps, D0 = last_mfma_w[r]
                    if not (D0 == Ct and ps == passes):
                        need = 10 if ps == 8 else 6
                        if dist(p0) < need: err(f"mfma D->mfma C overlap {r}")
            for r in W:
                if r in last_mfma_w and Dt != Ct:
                    p0, ps, D0 = last_mfma_w[r]
                    need = 12 if ps == 8 else 8
                    if dist(p0) < need: err(f"mfma D->mfma D WAW (conservative) {r}")
            for r in W:
                last_mfma_w[r] = (pos, passes, Dt)
            for r in X:
                last_mfma_c[r] = (pos, passes)
        else:
            for r in set(R) | set(W):
                if r in last_mfma_w and kind in ("valu", "dsr", "dsw", "vld", "vst", "dma"):
                    p0, ps, _ = last_mfma_w[r]
                    need = 12 if ps == 8 else 8
                    if dist(p0) < need: err(f"mfma D->{kind} {r} dist {dist(p0)}")
            if kind in ("valu", "dsr", "vld"):
                for r in W:
                    if r in last_mfma_c:
                        p0, ps = last_mfma_c[r]
                        need = 7 if ps == 8 else 3
                        if dist(p0) < need: err(f"mfma C read->{kind} write {r}")
                    if r in last_store_data and dist(last_store_data[r]) < 2: err(f"store data WAR {r}")
            if kind == "valu":
                for r in R:
                    if r in last_trans_w and dist(last_trans_w[r]) < 1 and op.replace("_e32", "").replace("_e64", "") not in TRANS: err(f"trans->valu {r}")
                    if r[0] == 's' and r in last_valu_w and dist(last_valu_w[r]) < 2: err(f"valu sgpr write->valu read {r}")
                if op.startswith("v_readfirstlane") or op.startswith("v_readlane"):
                    for r in R:
                        if r in last_valu_w and dist(last_valu_w[r]) < 1: err(f"valu->readlane {r}")
                if op.startswith("v_permlane"):
                    for r in R:
                        if r in last_valu_w and dist(last_valu_w[r]) < 2: err(f"valu->permlane {r}")
                if op.startswith("v_cndmask"):
                    r = ("x", "vcc")
                    if "vcc" in l and r in last_valu_w and dist(last_valu_w[r]) < 2: err("vcc->cndmask")
                for r in W:
                    last_valu_w[r] = pos
                    if op.replace("_e32", "").replace("_e64", "") in TRANS: last_trans_w[r] = pos
                    else: last_trans_w.pop(r, None)
            if kind in ("vld", "vst", "dma"):
                for r in R:
                    if r[0] == 's' and r in last_valu_w and dist(last_valu_w[r]) < 5: err(f"valu sgpr->vmem {r}")
                if kind == "dma" and dist(last_m0) < 1: err("m0->dma")
                if kind == "vst" and X and ("x4" in op or "x3" in op):
                    for r in X: last_store_data[r] = pos
                vmq.append(set(W))
                if len(vmq) > 63: err("more than 63 vmem outstanding")
            if kind in ("dsr", "dsw"):
                lgq.append(set(W))
                if len(lgq) > 15: err("more than 15 lds outstanding")
            if kind == "smem":
                lgq.append(set(W)); smem_out = True
            if kind == "salu":
                for r in W:
                    if r == ("x", "m0"): last_m0 = pos
                    last_valu_w.pop(r, None)
        pos += 1
    if verbose:
        for e in errs[:40]: print(e)
        print(f"verify: {len(errs)} problems")
    return errs

if __name__ == "__main__":
    verify(open(sys.argv[1]).read())
```

```python
import sys, math
from core import *

LOG2E = 1.4426950408889634
K0 = 0.7978845608028654
C1 = -2.0 * LOG2E * K0
C2 = C1 * 0.044715

H_OFF = 0
PART_OFF = 32 << 20
RING = 147456
BIAS = 162688
LDS_BYTES = 163840

S_X, S_W1, S_WS, S_B1, S_W2, S_OUT, S_B2 = 8, 12, 16, 20, 24, 28, 32
sKA = 40
sWave, sRB, sKS, sDQ, sROT = 56, 57, 58, 59, 60

def srd(p, d, src, nbytes):
    p.s(f"s_mov_b32 s{d}, s{src}\ns_and_b32 s{d+1}, s{src+1}, 0xffff\ns_mov_b32 s{d+2}, {nbytes}\ns_mov_b32 s{d+3}, 0x20000")

def stamp(p, opt, k):
    if opt.get("stamps"):
        p.s(f"s_memrealtime s[{90+2*k}:{91+2*k}]")
        if k: p.wait_all(vm=False)

def stamp_store(p, opt, base, ks, nst=8):
    if not opt.get("stamps"):
        return
    p.wait_all()
    p.raw(f"""
    v_cmp_eq_u32 vcc, 0, v0
    s_and_saveexec_b64 s[4:5], vcc
    s_cbranch_execz L_st{base}
    s_mul_i32 s3, s2, {nst*8}
    s_add_u32 s3, s3, {STAMP_OFF + base*8}
    v_mov_b32 v1, s3""")
    for i, k in enumerate(ks):
        p.raw(f"    v_mov_b32 v2, s{90+2*k}\n    v_mov_b32 v3, s{91+2*k}\n    buffer_store_dwordx2 v[2:3], v1, s[{S_WS}:{S_WS+3}], 0 offen offset:{i*8}\n    s_nop 1")
    p.raw(f"L_st{base}:\n    s_mov_b64 exec, s[4:5]")

def common_ids(p, opt, exit_label):
    stamp(p, opt, 0)
    p.s(f"s_cmp_ge_u32 s2, 256\ns_cbranch_scc1 {exit_label}")
    p.s(f"s_load_dwordx16 s[{sKA}:{sKA+15}], s[0:1], 0")
    p.v("v_lshrrev_b32 v2, 6, v0\nv_and_b32 v1, 63, v0")
    p.v(f"v_readfirstlane_b32 s{sWave}, v2")
    p.s(f"""s_and_b32 s3, s2, 7
s_lshr_b32 s4, s2, 3
s_lshr_b32 s{sKS}, s3, 1
s_and_b32 s3, s3, 1
s_lshl_b32 s3, s3, 3
s_lshr_b32 s5, s4, 2
s_add_u32 s{sRB}, s3, s5
s_and_b32 s{sDQ}, s4, 3
s_and_b32 s{sROT}, s{sRB}, 3""")

class Window:
    def __init__(self, regs):
        self.regs = regs
    def at(self, addr):
        return self.regs[addr >> 16], addr & 0xffff

def gen_p1(p, opt):
    PD = opt.get("pd1", 3)
    NA = PD + 2
    BUD = opt.get("bud1", 24)
    kpx = list(range(61, 70)); kpw = list(range(70, 79)); cb = [79, 80, 81, 82]; cbH = 83
    sLx, sLw, sLh = 84, 85, 86
    sT = 87; sHb = 89
    sHo = [40, 41, 42, 43, 44]; sBo = [45, 46, 47, 48, 49]
    sFH, sMH, sPAR = 4, 5, 6
    vXoff = [2, 3, 4, 5]; vWoff = [6, 7]; vWHoff = 8
    vXrd = [[10, 11, 12, 13], [14, 15, 16, 17]]
    wW = Window([18, 19, 20]); wWH = Window([21, 22, 23])
    vHst = [24, 25]; vBias = 26; vHH16 = 27; vC2 = 28
    vTmp = [38, 39, 40, 41, 42, 43]
    vPk = [44, 48, 52, 56]
    vA = [60 + 4 * i for i in range(NA)]
    assert vA[-1] + 3 < 84
    vAcc = [84, 116, 180]
    vXx = 148
    vBi = 212
    def xfrag(s, k):
        idx = s * 36 + k
        return rr('a', 4 * idx, 4) if idx < 64 else rr('v', vXx + 4 * (idx - 64), 4)

    common_ids(p, opt, "L_p1_end")
    p.c("lane patterns (independent of kernargs)")
    p.s(f"s_and_b32 s{sFH}, s{sWave}, 1\ns_lshr_b32 s{sMH}, s{sWave}, 1\ns_and_b32 s{sPAR}, s{sDQ}, 1")
    a, b, c_, d = 30, 31, 32, 33
    p.v(f"v_lshrrev_b32 v{a}, 3, v1\nv_and_b32 v{b}, 7, v1\nv_lshrrev_b32 v{c_}, 4, v1")
    p.s(f"s_mul_i32 s7, s{sWave}, 36864")
    p.v(f"v_mul_u32_u24 v{d}, 1152, v{a}\nv_add_u32 v{d}, s7, v{d}")
    for n in range(4):
        p.v(f"v_or_b32 v34, {4*(n&1)}, v{c_}\nv_xor_b32 v34, v34, v{b}\nv_lshl_add_u32 v34, v34, 4, v{d}\nv_add_u32 v{vXoff[n]}, {n*8192}, v34")
    p.s(f"s_mul_i32 s7, s{sWave}, {16*9216}")
    p.v(f"v_mul_u32_u24 v{d}, 9216, v{a}\nv_add_u32 v{d}, s7, v{d}")
    p.v(f"v_lshrrev_b32 v34, 1, v{a}\nv_and_b32 v34, 1, v34\nv_lshlrev_b32 v34, 2, v34\nv_xor_b32 v34, v34, v{b}\nv_lshl_add_u32 v{vWoff[0]}, v34, 4, v{d}")
    p.v(f"v_add_u32 v{vWoff[1]}, {8*9216-1024}, v{vWoff[0]}")
    p.v(f"v_lshrrev_b32 v34, 2, v1\nv_mul_u32_u24 v34, 9216, v34\nv_add_u32 v34, s7, v34\nv_and_b32 v35, 3, v1\nv_lshl_add_u32 v{vWHoff}, v35, 4, v34")
    p.s(f"""s_mul_i32 s7, s{sKS}, 2304
s_mul_i32 s3, s{sDQ}, 576
s_add_u32 s7, s7, s3            ; f0*2
s_lshl_b32 s3, s{sPAR}, 6
s_add_u32 s3, s3, s7            ; first full chunk byte col""")
    for j in range(4):
        p.s(f"s_add_u32 s{cb[j]}, s{sROT}, {j}\ns_and_b32 s{cb[j]}, s{cb[j]}, 3\ns_lshl_b32 s{cb[j]}, s{cb[j]}, 7\ns_add_u32 s{cb[j]}, s{cb[j]}, s3")
    p.s(f"s_xor_b32 s3, s{sPAR}, 1\ns_lshl_b32 s3, s3, 9\ns_add_u32 s{cbH}, s3, s7")
    p.v(f"v_add_u32 v{vWoff[0]}, s{cb[0]}, v{vWoff[0]}\nv_add_u32 v{vWoff[1]}, s{cb[0]}, v{vWoff[1]}\nv_add_u32 v{vWHoff}, s{cbH}, v{vWHoff}")
    for j in (3, 2, 1): p.s(f"s_sub_u32 s{cb[j]}, s{cb[j]}, s{cb[j-1]}")
    p.s(f"s_mul_i32 s{sT}, s{sRB}, {128*1152}\ns_lshl_b32 s3, s{sDQ}, 1")
    for j in range(9):
        p.s(f"s_add_u32 s{kpw[j]}, s3, {j}\ns_cmp_ge_u32 s{kpw[j]}, 9\ns_cselect_b32 s{kpx[j]}, 9, 0\ns_sub_u32 s{kpw[j]}, s{kpw[j]}, s{kpx[j]}")
        p.s(f"s_lshl_b32 s{kpx[j]}, s{kpw[j]}, 7\ns_add_u32 s{kpx[j]}, s{kpx[j]}, s{sT}\ns_mul_i32 s{kpw[j]}, s{kpw[j]}, 589824")
    p.s(f"s_lshl_b32 s{sLx}, s{sWave}, 12\ns_lshl_b32 s{sLw}, s{sWave}, 11\ns_lshl_b32 s{sLh}, s{sWave}, 10")
    p.s("s_waitcnt lgkmcnt(0)")
    stamp(p, opt, 1)
    srd(p, S_X, sKA + 0, 2048 * 576 * 2)
    srd(p, S_W1, sKA + 2, 576 * 4608 * 2)
    NT = " nt" if opt.get("nt_w") else ""

    stages = []
    addr = 0
    def alloc(sz):
        nonlocal addr
        if addr + sz > RING: addr = 0
        a0 = addr; addr += sz
        return a0
    for j in range(9):
        stages.append(dict(kind="F0", chunk=0, pieces=[j], size=24576, addr=alloc(24576)))
    for ch in (1, 2, 3):
        for g in range(3):
            stages.append(dict(kind="F", chunk=ch, pieces=[3*g, 3*g+1, 3*g+2], size=24576, addr=alloc(24576)))
    for g in range(3):
        stages.append(dict(kind="H", chunk=4, pieces=[3*g, 3*g+1, 3*g+2], size=12288, addr=alloc(12288)))
    def dma_items(si):
        st = stages[si]; out = []
        if st["kind"] == "F0":
            j = st["pieces"][0]
            for n in range(4):
                pre = [f"s_add_u32 m0, s{sLx}, {st['addr']}"] if n == 0 else []
                out.append((pre, f"buffer_load_dwordx4 v{vXoff[n]}, s[{S_X}:{S_X+3}], s{kpx[j]} offen offset:{n*1024} lds"))
            for n in range(2):
                pre = [f"s_add_u32 m0, s{sLw}, {st['addr']+16384}"] if n == 0 else []
                out.append((pre, f"buffer_load_dwordx4 v{vWoff[n]}, s[{S_W1}:{S_W1+3}], s{kpw[j]} offen offset:{n*1024}{NT} lds"))
        elif st["kind"] == "F":
            for pi, j in enumerate(st["pieces"]):
                for n in range(2):
                    pre = [f"s_add_u32 m0, s{sLw}, {st['addr']+8192*pi}"] if n == 0 else []
                    if n == 0 and j == 0:
                        ch = st['chunk']
                        pre = [f"v_add_u32 v{vWoff[0]}, s{cb[ch]}, v{vWoff[0]}", f"v_add_u32 v{vWoff[1]}, s{cb[ch]}, v{vWoff[1]}"] + pre
                    out.append((pre, f"buffer_load_dwordx4 v{vWoff[n]}, s[{S_W1}:{S_W1+3}], s{kpw[j]} offen offset:{n*1024}{NT} lds"))
        else:
            for pi, j in enumerate(st["pieces"]):
                pre = [f"s_add_u32 m0, s{sLh}, {st['addr']+4096*pi}"]
                out.append((pre, f"buffer_load_dwordx4 v{vWHoff}, s[{S_W1}:{S_W1+3}], s{kpw[j]} offen{NT} lds"))
        return out
    def overlap(a, b):
        return a["addr"] < b["addr"] + b["size"] and b["addr"] < a["addr"] + a["size"]
    earliest = []
    for si, st in enumerate(stages):
        e = -1
        for sj in range(si):
            if overlap(stages[sj], st): e = max(e, sj + 2)
        earliest.append(e)
    next_dma = 0
    dmaq = []
    def release(bar):
        nonlocal next_dma
        while next_dma < len(stages) and earliest[next_dma] <= bar:
            for it in dma_items(next_dma):
                dmaq.append((next_dma, it))
            next_dma += 1
    def issue_pre(p):
        si, (pre, txt) = dmaq[0]
        for l in pre:
            (p.v if l.startswith("v_") else p.s)(l)
        dmaq[0] = (si, ([], txt))
        return len(pre)
    def issue_dma(p, nop=True):
        if issue_pre(p) and nop: p.s("s_nop 0")
        si, (pre, txt) = dmaq.pop(0)
        p.vmem(txt, ("dma", si))
    release(-1)
    for _ in range(6): issue_dma(p)
    srd(p, S_B1, sKA + 4, 4608 * 2)
    p.s(f"s_add_u32 s3, s{cbH}, 0\ns_mul_i32 s3, s{sKS}, 2304\ns_mul_i32 s7, s{sDQ}, 576\ns_add_u32 s7, s7, s3")
    p.v(f"v_lshlrev_b32 v34, 2, v0")
    p.vmem(f"buffer_load_dword v36, v34, s[{S_B1}:{S_B1+3}], s7 offen", "bias")
    while dmaq: issue_dma(p)
    srd(p, S_WS, sKA + 14, 0x10000000)
    p.v(f"v_and_b32 v{a}, 31, v1\nv_lshrrev_b32 v{b}, 5, v1")
    p.v(f"v_lshrrev_b32 v{c_}, 1, v{a}\nv_and_b32 v{c_}, 7, v{c_}\nv_xor_b32 v{c_}, v{c_}, v{b}")
    p.s(f"s_lshl_b32 s7, s{sMH}, 13\ns_lshl_b32 s3, s{sFH}, 12\ns_add_u32 s7, s7, s3\ns_xor_b32 s3, s7, 4096")
    p.v(f"v_lshlrev_b32 v{d}, 7, v{a}")
    for kk in range(4):
        p.v(f"v_xor_b32 v34, {2*kk}, v{c_}\nv_lshl_add_u32 v34, v34, 4, v{d}\nv_add_u32 v{vXrd[0][kk]}, s7, v34\nv_add_u32 v{vXrd[1][kk]}, s3, v34")
    p.v(f"v_lshlrev_b32 v{vHH16}, 4, v{b}")
    p.s(f"s_lshl_b32 s7, s{sMH}, 12\ns_lshl_b32 s3, s{sFH}, 11\ns_add_u32 s7, s7, s3\ns_xor_b32 s3, s7, 2048")
    p.v(f"v_lshrrev_b32 v34, 4, v{a}\nv_lshlrev_b32 v34, 10, v34\nv_lshl_add_u32 v34, v{b}, 8, v34\nv_and_b32 v35, 15, v{a}\nv_lshl_add_u32 v34, v35, 4, v34")
    p.v(f"v_add_u32 v{vHst[0]}, s7, v34\nv_add_u32 v{vHst[1]}, s3, v34")
    p.v(f"v_bfe_u32 v{a}, v1, 2, 2\nv_lshl_add_u32 v{c_}, v{b}, 3, v{a}")
    p.v(f"v_bfe_u32 v34, v1, 4, 1\nv_lshlrev_b32 v34, 5, v34\nv_and_b32 v35, 3, v1\nv_lshl_add_u32 v34, v35, 3, v34")
    p.v(f"v_lshl_add_u32 v{wWH.regs[0]}, v{c_}, 6, v34")
    p.v(f"v_lshrrev_b32 v35, 1, v{a}\nv_xor_b32 v35, s{sFH}, v35\nv_lshl_add_u32 v34, v35, 6, v34\nv_lshl_add_u32 v{wW.regs[0]}, v{c_}, 7, v34")
    for w in (wW, wWH):
        p.v(f"v_add_u32 v{w.regs[1]}, 0x10000, v{w.regs[0]}\nv_add_u32 v{w.regs[2]}, 0x20000, v{w.regs[0]}")
    p.v(f"v_mov_b32 v{vC2}, {hex(f32bits(C2))}")
    p.s(f"s_lshl_b32 s3, s{sRB}, 2\ns_add_u32 s3, s3, s{sKS}\ns_mul_i32 s{sHb}, s3, 294912\ns_mul_i32 s3, s{sDQ}, {9*8192}\ns_add_u32 s{sHb}, s{sHb}, s3")
    if H_OFF: p.s(f"s_add_u32 s{sHb}, s{sHb}, {H_OFF}")
    p.wait(vm=["bias"])
    p.v(f"v_lshlrev_b32 v34, 16, v36\nv_and_b32 v35, 0xffff0000, v36\nv_lshlrev_b32 v37, 3, v0\nv_add_u32 v37, {BIAS}, v37")
    p.v("v_cmp_gt_u32 vcc, 144, v0")
    p.s("s_and_saveexec_b64 s[96:97], vcc")
    p.lds("ds_write_b64 v37, v[34:35]", "biasw")
    p.s("s_mov_b64 exec, s[96:97]")
    p.wait(lg=["biasw"])

    ksteps = []
    for si, st in enumerate(stages):
        for pi, j in enumerate(st["pieces"]):
            for kk in range(4):
                if st["kind"] == "F0": aaddr = st["addr"] + 16384 + kk * 2048
                elif st["kind"] == "F": aaddr = st["addr"] + 8192 * pi + kk * 2048
                else: aaddr = st["addr"] + 4096 * pi + kk * 1024
                ksteps.append(dict(stage=si, chunk=st["chunk"], k=4 * j + kk, kk=kk, aaddr=aaddr, kind=st["kind"], xaddr=st["addr"]))
    xwin = [0]
    def reads_for(ki):
        ks = ksteps[ki]; A = vA[ki % NA]; out = []
        for q in range(2):
            if ks["kind"] == "H":
                r, imm = wWH.at(ks["aaddr"] + q * 256)
            else:
                r, imm = wW.at(ks["aaddr"] + q * 512)
            out.append((f"ds_read_b64_tr_b16 v[{A+2*q}:{A+2*q+1}], v{r} offset:{imm}", ("A", ki)))
        if ks["kind"] == "F0":
            for s in range(2):
                out.append((f"ds_read_b128 {xfrag(s, ks['k'])}, v{vXrd[s][ks['kk']]} offset:{ks['xaddr'] & 0xffff}", ("A", ki)))
        return out
    def tile_scalars(ch):
        if ch < 4:
            return [f"s_add_u32 s3, s{sROT}, {ch}", "s_and_b32 s3, s3, 3", "s_lshl_b32 s3, s3, 1", f"s_add_u32 s3, s3, s{sPAR}", f"s_add_u32 s3, s3, s{sFH}"]
        return [f"s_xor_b32 s3, s{sPAR}, 1", "s_lshl_b32 s3, s3, 3"]
    for ch in range(5):
        for l in tile_scalars(ch): p.s(l)
        p.s(f"s_lshl_b32 s7, s3, 7\ns_add_u32 s{sBo[ch]}, s7, {BIAS}\ns_lshl_b32 s3, s3, 13\ns_add_u32 s{sHo[ch]}, s3, s{sHb}")
    def bias_setup(ch):
        p.v(f"v_add_u32 v{vBias}, s{sBo[ch]}, v{vHH16}")
    def bias_reads(ch):
        return [(f"ds_read_b128 v[{vBi+4*i}:{vBi+4*i+3}], v{vBias} offset:{32*i}", ("bias", ch)) for i in range(4)]
    geluq = []
    pkc = [0]
    C1h = hex(f32bits(C1))
    def gelu_chunk(ch):
        acc = vAcc[ch % 3]
        pairs = []
        for st_ in range(2 if ch < 4 else 1):
            for half in range(2):
                P = vPk[pkc[0] % 4]; pkc[0] += 1
                for pr in range(4):
                    x0 = acc + 16 * st_ + 8 * half + 2 * pr
                    stx = ('st', f"buffer_store_dwordx4 v[{P}:{P+3}], v{vHst[st_]}, s[{S_WS}:{S_WS+3}], s{sHo[ch]} offen offset:{half*512} sc1", ch) if pr == 3 else None
                    pairs.append((x0, x0 + 1, P + pr, stx))
        n = len(pairs)
        def T(k): return vTmp[2 * (k % 3)], vTmp[2 * (k % 3) + 1]
        def early(k, i):
            if k >= n: return []
            x = pairs[k][i & 1]; t = T(k)[i & 1]
            if i < 2: return [('v', f"v_mul_f32 v{t}, v{x}, v{x}", 4)]
            if i < 4: return [('v', f"v_fmaak_f32 v{t}, v{t}, v{vC2}, {C1h}", 4)]
            return [('v', f"v_mul_f32 v{t}, v{t}, v{x}", 4)]
        def cvt(k):
            if k < 0: return []
            t0, t1 = T(k)
            o = [('v', f"v_cvt_pk_bf16_f32 v{pairs[k][2]}, v{t0}, v{t1}", 4)]
            if pairs[k][3]: o.append(pairs[k][3])
            return o
        for i in range(6): geluq.extend(early(0, i))
        for k in range(n):
            t0, t1 = T(k); x0, x1 = pairs[k][0], pairs[k][1]
            pad = [('v', "v_nop", 4)] if k == n - 1 else []
            geluq.extend([('v', f"v_exp_f32 v{t0}, v{t0}", 8)] + early(k+1, 0) + early(k+1, 1) + pad + [('v', f"v_add_f32 v{t0}, 1.0, v{t0}", 4)])
            geluq.extend([('v', f"v_exp_f32 v{t1}, v{t1}", 8)] + early(k+1, 2) + early(k+1, 3) + pad + [('v', f"v_add_f32 v{t1}, 1.0, v{t1}", 4)])
            geluq.extend([('v', f"v_rcp_f32 v{t0}, v{t0}", 8)] + early(k+1, 4) + early(k+1, 5) + pad + [('v', f"v_mul_f32 v{t0}, v{t0}, v{x0}", 4)])
            geluq.extend([('v', f"v_rcp_f32 v{t1}, v{t1}", 8)] + (cvt(k-1) if k else [('v', "v_nop", 4)]) + [('v', f"v_mul_f32 v{t1}, v{t1}, v{x1}", 4)])
        geluq.extend(cvt(n - 1))
        geluq.append(('done', ch))
    gelu_done = set()

    bars_passed = -1
    def pass_barrier(si):
        nonlocal bars_passed
        p.wait(vm=[("dma", si)])
        p.s("s_barrier")
        bars_passed = si
        release(si)
        if si in (3, 6):
            delta = "0x10000" if si == 3 else "0xffff0000"
            for s in range(2):
                for kk in range(4): p.v(f"v_add_u32 v{vXrd[s][kk]}, {delta}, v{vXrd[s][kk]}")
    rdq = []
    issued_upto = -1
    def want_reads(ki):
        nonlocal issued_upto
        if ki < len(ksteps) and ki > issued_upto:
            assert ki == issued_upto + 1
            rdq.append(("stage", ksteps[ki]["stage"]))
            rdq.extend(reads_for(ki)); issued_upto = ki
    def pop_read():
        while rdq and rdq[0][0] == "stage":
            si = rdq.pop(0)[1]
            if si > bars_passed: pass_barrier(si)
        if rdq:
            t, tag = rdq.pop(0); p.lds(t, tag); return True
        return False
    bias_setup(0)
    pass_barrier(0)
    stamp(p, opt, 2)
    for t, tag in bias_reads(0): p.lds(t, tag)
    for ki in range(PD):
        if ki == 2: p.wait(lg=[("bias", 0)])
        want_reads(ki)
        while rdq: pop_read()
    p.wait(lg=[("A", 0), ("bias", 0)])
    nk = len(ksteps)
    for ki, ks in enumerate(ksteps):
        ch = ks["chunk"]; acc = vAcc[ch % 3]; A = vA[ki % NA]
        first = (ki == 0 or ksteps[ki - 1]["chunk"] != ch)
        last = (ki == nk - 1 or ksteps[ki + 1]["chunk"] != ch)
        kin = sum(1 for x in ksteps[:ki] if x["chunk"] == ch)
        if first:
            p.c(f"---- chunk {ch}")
            assert ch < 3 or (ch - 3) in gelu_done, "acc buffer still in use"
        sets = [0] if ks["kind"] == "H" else [0, 1]
        want_reads(ki + PD)
        if kin == (2 if ch < 4 else 3) and ch >= 1: gelu_chunk(ch - 1)
        nextch = ch + 1
        for mi, s in enumerate(sets):
            D = acc + 16 * s
            Cc = vBi if first else D
            p.mfma(f"v_mfma_f32_32x32x16_bf16 v[{D}:{D+15}], v[{A}:{A+3}], {xfrag(s, ks['k'])}, v[{Cc}:{Cc+15}]")
            bud = BUD; nvec = 0; nsc = 0
            lastm = (mi == len(sets) - 1)
            if lastm and ki + 1 < nk:
                if p.wait(lg=[("A", ki + 1)] + ([("bias", nextch)] if last else [])): nsc += 1
            dma_ok = bool(dmaq)
            if dmaq and dmaq[0][1][0]:
                if nsc == 0 or ks["kind"] != "F":
                    k_ = issue_pre(p); nsc += 1; nvec += k_ - 1; bud -= 4 * (k_ - 1)
                else:
                    dma_ok = False
            elif nsc == 0 and geluq and geluq[0][0] == 's':
                p.s(geluq.pop(0)[1]); nsc += 1
            bud -= 4 * max(0, nsc - 1)
            nrd = len([x for x in rdq if x[0] != "stage"])
            take = nrd if lastm else (nrd + 1) // 2
            for _ in range(take):
                pop_read(); bud -= 4; nvec += 1
            if take == 0 and dma_ok: p.s("s_nop 0")
            if nextch <= 4 and 14 <= kin < 18 and mi == 0:
                t, tag = bias_reads(nextch)[kin - 14]; p.lds(t, tag); bud -= 4; nvec += 1
            ndma = 2 if ks["kind"] in ("F0",) else 1
            for _ in range(ndma):
                if dma_ok and dmaq and not dmaq[0][1][0]:
                    issue_dma(p); bud -= 4; nvec += 1
            if nextch <= 4 and kin == 12 and mi == 0:
                pend_bias = True
            while geluq and geluq[0][0] in ('st', 'done'):
                it = geluq.pop(0)
                if it[0] == 'st': p.vmem(it[1], ("hst", it[2])); bud -= 4; nvec += 1
                else: gelu_done.add(it[1])
            if nextch <= 4 and kin == 12 and mi == 0:
                bias_setup(nextch); bud -= 4; nvec += 1
            while geluq and geluq[0][0] == 'v' and bud >= geluq[0][2] and nvec < 5:
                it = geluq.pop(0); p.v(it[1]); bud -= it[2]; nvec += 1
            p.check_counts()
    print("gelu items left at end of P1 mfma stream:", len(geluq))
    stamp(p, opt, 3)
    p.c("---- tail: finish gelu")
    p.s("s_nop 7\ns_nop 3")
    gelu_chunk(4)
    for it in geluq:
        if it[0] == 'st': p.vmem(it[1])
        elif it[0] == 's': p.s(it[1])
        elif it[0] == 'v': p.v(it[1])
    if opt.get("stamps"):
        p.wait_all()
        stamp(p, opt, 4)
        stamp_store(p, opt, 0, [0, 1, 2, 3, 4], nst=16)
    p.raw("L_p1_end:\n    s_endpgm")

def gen_p2(p, opt):
    PD = opt.get("pd2", 4)
    NA = PD + 2
    sAw = [61, 62, 63, 64]; sCw = [65, 66, 67, 68]; sAh = [69, 70, 71, 72]; sCh = [73, 74, 75, 76]
    sW2b, sHb, sL2, sTw, sTh = 77, 78, 79, 80, 81
    vW2off = [2, 3, 4, 5, 6]; wA = Window([8, 9, 10]); vHld = [11, 12]; vPst = 13
    vA = [16 + 4 * i for i in range(NA)]
    vAcc = 64
    vPk = [140, 144]
    common_ids(p, opt, "L_p2_end")
    p.s(f"s_lshr_b32 s3, s{sWave}, 1\ns_and_b32 s4, s{sWave}, 1\ns_mul_i32 s5, s3, {32*1152}\ns_lshl_b32 s6, s4, 8")
    p.s(f"s_mul_i32 s{sL2}, s3, 9216\ns_lshl_b32 s7, s4, 12\ns_add_u32 s{sL2}, s{sL2}, s7")
    for j in range(5):
        p.v(f"v_add_u32 v30, s6, v1\nv_add_u32 v30, {64*j}, v30\nv_mul_u32_u24 v31, 3641, v30\nv_lshrrev_b32 v31, 16, v31")
        p.v(f"v_mul_u32_u24 v32, 18, v31\nv_sub_u32 v32, v30, v32\nv_mul_u32_u24 v31, 1152, v31\nv_lshl_add_u32 v31, v32, 4, v31")
        p.v(f"v_add_u32 v31, s5, v31")
        if j in (1, 2, 3): p.v(f"v_subrev_u32 v{vW2off[j]}, {1024*j}, v31")
        else: p.v(f"v_mov_b32 v{vW2off[j]}, v31")
    p.s(f"s_lshl_b32 s3, s{sWave}, 11")
    p.v(f"v_lshl_add_u32 v{vHld[0]}, v1, 4, s3\nv_add_u32 v{vHld[1]}, 0x2000, v{vHld[0]}")
    for i in range(4):
        p.s(f"s_add_u32 s3, s{sDQ}, {i}\ns_and_b32 s3, s3, 3\ns_and_b32 s4, s3, 1\ns_mul_i32 s3, s3, 9\ns_add_u32 s3, s3, s4")
        p.s(f"s_mul_i32 s{sAw[i]}, s3, 36864\ns_lshl_b32 s{sAh[i]}, s3, 13")
        p.s(f"s_add_u32 s3, s{sROT}, {i}\ns_and_b32 s3, s3, 3\ns_mul_i32 s{sCw[i]}, s3, 73728\ns_lshl_b32 s{sCh[i]}, s3, 14")
    p.s(f"s_mul_i32 s{sW2b}, s{sKS}, {1152*1152}\ns_mul_i32 s3, s{sDQ}, 288\ns_add_u32 s{sW2b}, s{sW2b}, s3")
    p.s(f"s_lshl_b32 s3, s{sRB}, 2\ns_add_u32 s3, s3, s{sKS}\ns_mul_i32 s{sHb}, s3, 294912")
    if H_OFF: p.s(f"s_add_u32 s{sHb}, s{sHb}, {H_OFF}")
    for i in range(4):
        p.s(f"s_add_u32 s{sAw[i]}, s{sAw[i]}, s{sW2b}\ns_add_u32 s{sAh[i]}, s{sAh[i]}, s{sHb}")
    p.s("s_waitcnt lgkmcnt(0)")
    stamp(p, opt, 1)
    srd(p, S_W2, sKA + 6, 4608 * 576 * 2)
    srd(p, S_WS, sKA + 14, 0x10000000)
    NT = " nt" if opt.get("nt_w") else ""
    NST = 18
    def stage_addr(si): return 18432 * (si % 8)
    def soffs(si):
        if si < 16:
            pp, i = si // 4, si % 4
            return [f"s_add_u32 s{sTw}, s{sAw[i]}, s{sCw[pp]}"], [f"s_add_u32 s{sTh}, s{sAh[i]}, s{sCh[pp]}"]
        k0 = 8 if si == 16 else 26
        return [f"s_add_u32 s{sTw}, s{sW2b}, {k0*36864}"], [f"s_add_u32 s{sTh}, s{sHb}, {k0*8192}"]
    def bfrag(kg, mt):
        idx = (2 * kg + mt) % 64
        return rr('a', 4 * idx, 4)
    def dma_items(si):
        w, h = soffs(si); out = []
        for j in range(5):
            pre = []
            if j == 0: pre = w + [f"s_add_u32 m0, s{sL2}, {stage_addr(si)}"]
            if j == 4: pre = [f"s_add_u32 m0, s{sL2}, {stage_addr(si)+4096}"]
            out.append((pre, f"buffer_load_dwordx4 v{vW2off[j]}, s[{S_W2}:{S_W2+3}], s{sTw} offen offset:{1024*(j%4)}{NT} lds", ("dma", si), True))
        for kk in range(2):
            for mt in range(2):
                pre = h if (kk == 0 and mt == 0) else []
                out.append((pre, f"buffer_load_dwordx4 {bfrag(2*si+kk, mt)}, v{vHld[kk]}, s[{S_WS}:{S_WS+3}], s{sTh} offen offset:{1024*mt}", ("h", 2*si+kk), False))
        return out
    dmaq = []; next_dma = 0
    LOOK = opt.get("look2", 6)
    def release(bar):
        nonlocal next_dma
        while next_dma < NST and next_dma <= bar + LOOK:
            dmaq.extend(dma_items(next_dma)); next_dma += 1
    def issue_dma():
        pre, txt, tag, isdma = dmaq.pop(0)
        for l in pre: p.s(l)
        if pre and isdma: p.s("s_nop 0")
        p.vmem(txt, tag)
    release(-1)
    for _ in range(9): issue_dma()
    p.v("v_bfe_u32 v30, v1, 5, 1\nv_lshlrev_b32 v30, 4, v30\nv_bfe_u32 v31, v1, 4, 1\nv_lshl_add_u32 v30, v31, 2, v30\nv_bfe_u32 v31, v1, 2, 2\nv_add_u32 v30, v30, v31")
    p.v(f"v_mul_u32_u24 v30, 288, v30\nv_and_b32 v31, 3, v1\nv_lshl_add_u32 v{wA.regs[0]}, v31, 3, v30")
    p.v(f"v_add_u32 v{wA.regs[1]}, 0x10000, v{wA.regs[0]}\nv_add_u32 v{wA.regs[2]}, 0x20000, v{wA.regs[0]}")
    p.s(f"s_lshl_b32 s3, s{sRB}, 2\ns_add_u32 s3, s3, s{sDQ}\ns_lshl_b32 s3, s3, 2\ns_add_u32 s3, s3, s{sKS}\ns_mul_i32 s3, s3, 36864\ns_mul_i32 s4, s{sWave}, 9216\ns_add_u32 s3, s3, s4\ns_add_u32 s3, s3, {PART_OFF}")
    p.v(f"v_lshl_add_u32 v{vPst}, v1, 4, s3")
    while dmaq: issue_dma()
    frags = [(kg, t) for kg in range(36) for t in range(9)]
    bars = -1
    def pass_barrier(si):
        nonlocal bars
        p.wait(vm=[("dma", si)])
        p.s("s_barrier"); bars = si; release(si)
    def issue_reads(fi):
        if fi >= len(frags): return 0
        kg, t = frags[fi]; si = kg // 2
        if si > bars: pass_barrier(si)
        A = vA[fi % NA]
        for q in range(2):
            r, imm = wA.at(stage_addr(si) + (kg & 1) * 9216 + q * 2304 + 32 * t)
            p.lds(f"ds_read_b64_tr_b16 v[{A+2*q}:{A+2*q+1}], v{r} offset:{imm}", ("A", fi))
        return 2
    pass_barrier(0)
    stamp(p, opt, 2)
    for fi in range(PD): issue_reads(fi)
    p.wait(vm=[("h", 0)], lg=[("A", 0)])
    for fi, (kg, t) in enumerate(frags):
        A = vA[fi % NA]
        for mt in range(2):
            D = vAcc + 8 * t + 4 * mt
            Cc = "0" if kg == 0 else f"v[{D}:{D+3}]"
            p.mfma(f"v_mfma_f32_16x16x32_bf16 v[{D}:{D+3}], v[{A}:{A+3}], {bfrag(kg, mt)}, {Cc}")
            if mt == 0:
                issue_reads(fi + PD)
            else:
                if fi + 1 < len(frags):
                    p.wait(vm=[("h", frags[fi + 1][0])], lg=[("A", fi + 1)])
                if dmaq: issue_dma()
            p.check_counts()
    stamp(p, opt, 3)
    p.s("s_nop 7")
    for t in range(9):
        P = vPk[t % 2]; D = vAcc + 8 * t
        for u in range(4): p.v(f"v_cvt_pk_bf16_f32 v{P+u}, v{D+2*u}, v{D+2*u+1}")
        if t in (4, 8): p.v(f"v_add_u32 v{vPst}, 0x1000, v{vPst}")
        p.vmem(f"buffer_store_dwordx4 v[{P}:{P+3}], v{vPst}, s[{S_WS}:{S_WS+3}], 0 offen offset:{1024*(t%4)} sc1")
    if opt.get("stamps"):
        p.wait_all()
        stamp(p, opt, 4)
        stamp_store(p, opt, 5, [0, 1, 2, 3, 4], nst=16)
    p.raw("L_p2_end:\n    s_endpgm")

def gen_k3(p, opt):
    stamp(p, opt, 0)
    p.s("s_cmp_ge_u32 s2, 256\ns_cbranch_scc1 L_k3_end")
    p.s(f"s_load_dwordx16 s[{sKA}:{sKA+15}], s[0:1], 0")
    p.v("v_lshrrev_b32 v2, 6, v0\nv_and_b32 v1, 63, v0")
    p.v(f"v_readfirstlane_b32 s{sWave}, v2")
    p.s("s_and_b32 s3, s2, 7\ns_lshl_b32 s3, s3, 5\ns_lshr_b32 s4, s2, 3\ns_add_u32 s3, s3, s4")
    p.s(f"s_lshr_b32 s{sRB}, s3, 4\ns_and_b32 s{sDQ}, s3, 3\ns_lshr_b32 s5, s3, 2\ns_and_b32 s5, s5, 3")
    p.s(f"s_lshl_b32 s6, s{sRB}, 2\ns_add_u32 s6, s6, s{sDQ}\ns_mul_i32 s6, s6, {4*36864}\ns_mul_i32 s7, s5, 9216\ns_add_u32 s6, s6, s7")
    p.s(f"s_lshl_b32 s7, s{sWave}, 10\ns_add_u32 s6, s6, s7\ns_add_u32 s6, s6, {PART_OFF}")
    p.v("v_lshlrev_b32 v2, 4, v1")
    p.s(f"s_mul_i32 s61, s{sDQ}, 288\ns_lshl_b32 s7, s{sWave}, 5\ns_add_u32 s61, s61, s7")
    p.v("v_lshrrev_b32 v3, 4, v1\nv_lshlrev_b32 v3, 3, v3")
    p.s(f"s_lshl_b32 s62, s{sRB}, 7\ns_lshl_b32 s7, s5, 5\ns_add_u32 s62, s62, s7\ns_mul_i32 s62, s62, 1152\ns_add_u32 s62, s62, s61")
    p.v("v_and_b32 v4, 15, v1\nv_mul_u32_u24 v4, 1152, v4\nv_add_u32 v4, v4, v3\nv_add_u32 v5, 18432, v4")
    p.s("s_waitcnt lgkmcnt(0)")
    srd(p, S_WS, sKA + 14, 0x10000000)
    for k in range(4):
        p.vmem(f"buffer_load_dwordx4 v[{8+4*k}:{11+4*k}], v2, s[{S_WS}:{S_WS+3}], s6 offen", ("p", k))
        if k < 3: p.s("s_add_u32 s6, s6, 36864")
    srd(p, S_B2, sKA + 8, 576 * 2)
    p.vmem(f"buffer_load_dwordx2 v[6:7], v3, s[{S_B2}:{S_B2+3}], s61 offen", "b2")
    srd(p, S_OUT, sKA + 10, 2048 * 576 * 2)
    p.wait(vm=[("p", 1)])
    def unpack(dst, src):
        p.v(f"v_lshlrev_b32 v{dst}, 16, v{src}\nv_and_b32 v{dst+1}, 0xffff0000, v{src}")
    for u in range(4): unpack(24 + 2 * u, 8 + u)
    for k in range(1, 4):
        p.wait(vm=[("p", k)])
        for u in range(4):
            unpack(32, 8 + 4 * k + u)
            p.v(f"v_add_f32 v{24+2*u}, v{24+2*u}, v32\nv_add_f32 v{25+2*u}, v{25+2*u}, v33")
    p.wait(vm=["b2"])
    unpack(32, 6); unpack(34, 7)
    for mt in range(2):
        for j in range(4): p.v(f"v_add_f32 v{24+4*mt+j}, v{24+4*mt+j}, v{32+j}")
        p.v(f"v_cvt_pk_bf16_f32 v{36+2*mt}, v{24+4*mt}, v{25+4*mt}\nv_cvt_pk_bf16_f32 v{37+2*mt}, v{26+4*mt}, v{27+4*mt}")
        p.vmem(f"buffer_store_dwordx2 v[{36+2*mt}:{37+2*mt}], v{4+mt}, s[{S_OUT}:{S_OUT+3}], s62 offen")
    if opt.get("stamps"):
        p.wait_all()
        stamp(p, opt, 4)
        stamp_store(p, opt, 10, [0, 4], nst=16)
    p.raw("L_k3_end:\n    s_endpgm")

def build(fname, opt):
    p = Prog()
    p.raw(f"; @launch kernel=p1_kernel grid=(256,1,1) block=(256,1,1) lds={LDS_BYTES}")
    p.raw(f"; @launch kernel=p2_kernel grid=(256,1,1) block=(256,1,1) lds={RING}")
    p.raw(f"; @launch kernel=k3_kernel grid=(256,1,1) block=(576,1,1) lds=0")
    for i in range(opt.get("extra_empty", 0)):
        p.raw(f"; @launch kernel=e_kernel grid=(256,1,1) block=(256,1,1) lds=0")
    p.raw(TARGET)
    p.raw(kernel_header("p1_kernel")); gen_p1(p, opt); p.vm = []; p.lg = []
    s1 = dict(p.stats); p.stats = {}
    p.raw(kernel_header("p2_kernel")); gen_p2(p, opt); p.vm = []; p.lg = []
    s2 = dict(p.stats); p.stats = {}
    p.raw(kernel_header("k3_kernel")); gen_k3(p, opt)
    if opt.get("extra_empty", 0):
        p.raw(kernel_header("e_kernel")); p.raw("    s_endpgm")
    p.raw(kernel_desc("p1_kernel"))
    p.raw(kernel_desc("p2_kernel"))
    p.raw(kernel_desc("k3_kernel", vgpr=40, sgpr=102, accum=40))
    if opt.get("extra_empty", 0):
        p.raw(kernel_desc("e_kernel", vgpr=8, sgpr=16, accum=8))
    open(fname, "w").write(p.text())
    print(fname, "p1", s1, "p2", s2)
    import verify
    verify.verify(p.text())

if __name__ == "__main__":
    build("u3.s", {})
    build("u3_st.s", {"stamps": 1})
    build("u3_e2.s", {"extra_empty": 2})
```
